```python
import torch

def _softmax(x, axis=-1):
    return torch.softmax(x, dim=axis)
def _gelu(x):
    return torch.nn.functional.gelu(x, approximate="tanh")
def _silu(x):
    return torch.nn.functional.silu(x)
def _sigmoid(x):
    return torch.sigmoid(x)
def _layernorm(x, axis=-1, eps=1e-5):
    m = x.mean(dim=axis, keepdim=True)
    v = x.var(dim=axis, keepdim=True, unbiased=False)
    return (x - m) / torch.sqrt(v + eps)
def _scatter_add(tgt, idx, src, axis=0):
    return tgt.clone().index_add_(axis, idx, src)
def _segment_sum(src, seg, n):
    out = torch.zeros((n,) + src.shape[1:], dtype=src.dtype)
    return out.index_add_(0, seg, src)
def _pad(x, pw):
    flat = tuple(v for pair in reversed(pw) for v in pair)
    return torch.nn.functional.pad(x, flat)

kernel_name = 'interleave_layers__linear_attn_block__mixer_token_mlp__prompt'

def setup_inputs():

    _w = (lambda a: (lambda t: t.to(torch.bfloat16) if t.is_floating_point() else t)(torch.as_tensor(a)))
    def _A_setup():
        B, S, D = 1, 2048, 512
        return {
            "x": _w((lambda *s: torch.randn(*s, dtype=torch.bfloat16) * 0.05)(B, S, D)),
            "wqkv": _w((lambda *s: torch.randn(*s, dtype=torch.bfloat16) * 0.05)(D, 3 * D)),
            "wo": _w((lambda *s: torch.randn(*s, dtype=torch.bfloat16) * 0.05)(D, D)),
        }
    _A_in = _A_setup()

    def _B_setup():
        B, S, D, F = 1, 2048, 512, 1792
        return {
            "x": _w((lambda *s: torch.randn(*s, dtype=torch.bfloat16) * 0.05)(B, S, D)),
            "w1": _w((lambda *s: torch.randn(*s, dtype=torch.bfloat16) * 0.8)(S, F) * (S ** -0.5)),
            "b1": _w((lambda *s: torch.randn(*s, dtype=torch.bfloat16) * 12.8)(F) * 0.02),
            "w2": _w((lambda *s: torch.randn(*s, dtype=torch.bfloat16) * 0.4)(F, S) * (F ** -0.5)),
            "b2": _w((lambda *s: torch.randn(*s, dtype=torch.bfloat16) * 3.2)(S) * 0.02),
        }
    _B_in = _B_setup()

    return {
        "A_x": _A_in["x"],
        "A_wqkv": _A_in["wqkv"],
        "A_wo": _A_in["wo"],
        "B_x": _B_in["x"],
        "B_w1": _B_in["w1"],
        "B_b1": _B_in["b1"],
        "B_w2": _B_in["w2"],
        "B_b2": _B_in["b2"],
    }

def reference(A_x, A_wqkv, A_wo, B_x, B_w1, B_b1, B_w2, B_b2):
    def _A_ref(x, wqkv, wo):
        B, S, D = x.shape
        H = 32; Dh = D // H
        qkv = (lambda x, *d: x.permute(*d))((x @ wqkv).reshape(B, S, 3, H, Dh), 2, 0, 3, 1, 4)
        q, k, v = qkv[0], qkv[1], qkv[2]
        phi = lambda t: torch.where(t > 0, t + 1, torch.exp(t)) + 1e-6
        pq, pk = phi(q), phi(k)
        kv = torch.einsum("bhsd,bhse->bhde", pk, v)
        z = torch.einsum("bhsd->bhd", pk)
        num = torch.einsum("bhqd,bhde->bhqe", pq, kv)
        den = torch.einsum("bhqd,bhd->bhq", pq, z)[..., None] + 1e-6
        o = num / den
        return (lambda x, *d: x.permute(*d))(o, 0, 2, 1, 3).reshape(B, S, D) @ wo

    def _B_ref(x, w1, b1, w2, b2):
        B, S, D = x.shape
        h = _layernorm(x, axis=-1)
        u = torch.einsum("bsd,sf->bdf", h, w1) + b1
        u = _gelu(u)
        y = torch.einsum("bdf,fs->bds", u, w2) + b2
        return (lambda x, *d: x.permute(*d))(y, 0, 2, 1)

    x = A_x
    x = x + _A_ref(_layernorm(x, axis=-1), A_wqkv, A_wo)
    x = x + _B_ref(_layernorm(x, axis=-1), B_w1, B_b1, B_w2, B_b2)
    x = x + _A_ref(_layernorm(x, axis=-1), A_wqkv, A_wo)
    x = x + _B_ref(_layernorm(x, axis=-1), B_w1, B_b1, B_w2, B_b2)
    return x
```

```python
import re

_REG = re.compile(r"^(-?\|?)(abs\()?([vas])(\d+)$|^(-?)([vas])\[(\d+):(\d+)\]$")


def regs_of(tok):
    tok = tok.strip()
    t = tok.lstrip('-').strip('|')
    if t.startswith('abs(') and t.endswith(')'):
        t = t[4:-1]
    m = re.match(r"^([vas])(\d+)$", t)
    if m:
        return {(m.group(1), int(m.group(2)))}
    m = re.match(r"^([vas])\[(\d+):(\d+)\]$", t)
    if m:
        return {(m.group(1), i) for i in range(int(m.group(2)), int(m.group(3)) + 1)}
    if t in ('vcc', 'vcc_lo', 'vcc_hi'):
        return {('x', 'vcc')}
    if t in ('exec', 'exec_lo', 'exec_hi'):
        return {('x', 'exec')}
    if t == 'm0':
        return {('x', 'm0')}
    return set()


TRANS = ('v_exp_f32', 'v_log_f32', 'v_rcp_f32', 'v_rsq_f32', 'v_sqrt_f32', 'v_sin_f32', 'v_cos_f32',
         'v_rcp_iflag_f32')


class Ins:
    __slots__ = ('text', 'mn', 'kind', 'w', 'r', 'srcC', 'srcAB', 'stdata', 'states', 'passes', 'flags')

    def __init__(self, text):
        self.text = text
        body = text.split(';')[0].strip()
        parts = body.split(None, 1)
        mn = parts[0]
        self.mn = mn
        rest = parts[1] if len(parts) > 1 else ''
        ops = []
        depth = 0
        cur = ''
        for ch in rest:
            if ch in '[(':
                depth += 1
            if ch in '])':
                depth -= 1
            if ch == ',' and depth == 0:
                ops.append(cur.strip())
                cur = ''
            else:
                cur += ch
        mods = ''
        if cur.strip():
            last = cur.strip().split(None, 1)
            ops.append(last[0])
            mods = last[1] if len(last) > 1 else ''
        self.flags = set(mods.split())
        w, r = set(), set()
        self.srcC = set()
        self.srcAB = set()
        self.stdata = set()
        self.states = 1
        self.passes = 0
        R = [regs_of(o) for o in ops]
        base = re.sub(r'_(e32|e64|dpp|sdwa)$', '', mn)
        if mn == 's_nop':
            self.kind = 'nop'
            self.states = int(ops[0], 0) + 1
        elif mn.startswith('v_mfma'):
            self.kind = 'mfma'
            w |= R[0]
            self.srcAB = R[1] | R[2]
            self.srcC = R[3]
            r |= self.srcAB | self.srcC
            self.passes = 8 if '32x32' in mn else 4
        elif mn.startswith('v_'):
            self.kind = 'valu'
            if base.startswith('v_cmp'):
                w |= R[0]
                if base.startswith('v_cmpx'):
                    w.add(('x', 'exec'))
                for x in R[1:]:
                    r |= x
            elif base in ('v_permlane32_swap_b32', 'v_permlane16_swap_b32', 'v_swap_b32'):
                w |= R[0] | R[1]
                r |= R[0] | R[1]
            elif base in ('v_add_co_u32', 'v_sub_co_u32', 'v_addc_co_u32', 'v_subb_co_u32'):
                w |= R[0] | R[1]
                for x in R[2:]:
                    r |= x
            else:
                w |= R[0]
                for x in R[1:]:
                    r |= x
                if base in ('v_fmac_f32', 'v_dot2c_f32_bf16', 'v_writelane_b32') or 'dpp' in mn or \
                        any(f.startswith('row_') or f.startswith('quad_perm') for f in self.flags):
                    r |= R[0]
                if base == 'v_cndmask_b32' and len(ops) == 3:
                    r.add(('x', 'vcc'))
        elif mn.startswith('ds_'):
            self.kind = 'ds'
            if mn.startswith('ds_read') or mn.startswith('ds_bpermute') or mn.startswith('ds_swizzle') or 'rtn' in mn:
                w |= R[0]
                for x in R[1:]:
                    r |= x
            else:
                for x in R:
                    r |= x
        elif mn.startswith('buffer_') or mn.startswith('global_'):
            self.kind = 'vmem'
            if mn in ('buffer_inv', 'buffer_wbl2'):
                pass
            elif 'lds' in self.flags or '_lds_' in mn:
                for x in R:
                    r |= x
                r.add(('x', 'm0'))
                self.flags.add('ldsdma')
            elif '_load_' in mn:
                w |= R[0]
                for x in R[1:]:
                    r |= x
            else:
                for x in R:
                    r |= x
                if mn.startswith('buffer_'):
                    data = R[0]
                else:
                    data = R[1]
                if 'atomic' in mn and 'sc0' in self.flags:
                    w |= R[0]
                if len(data) >= 3:
                    self.stdata = data
        elif mn.startswith('s_'):
            self.kind = 'salu'
            if mn.startswith('s_load') or mn.startswith('s_buffer_load') or mn in ('s_memtime', 's_memrealtime'):
                self.kind = 'smem'
                w |= R[0]
                for x in R[1:]:
                    r |= x
            elif mn.startswith('s_cmp') or mn.startswith('s_cbranch') or mn in (
                    's_waitcnt', 's_barrier', 's_branch', 's_endpgm', 's_sleep', 's_setprio', 's_bitcmp1_b32',
                    's_bitcmp0_b32'):
                for x in R:
                    r |= x
            else:
                w |= R[0]
                for x in R[1:]:
                    r |= x
                if 'saveexec' in mn:
                    w.add(('x', 'exec'))
        else:
            raise ValueError('unknown instruction ' + text)
        self.w, self.r = w, r

    def is_trans(self):
        return re.sub(r'_(e32|e64|dpp|sdwa)$', '', self.mn) in TRANS

    def is_dpp(self):
        return 'dpp' in self.mn or any(f.startswith('row_') or f.startswith('quad_perm') or f.startswith('wave_')
                                       for f in self.flags)

    def is_dot(self):
        return self.mn.startswith('v_dot')


def vec(s):
    return {x for x in s if x[0] in 'va'}


def sca(s):
    return {x for x in s if x[0] == 's' or x == ('x', 'vcc')}


def need(p, c):
    n = 0
    if p.kind == 'mfma':
        e = p.passes == 8
        if c.kind == 'mfma':
            if p.w & c.srcAB:
                n = max(n, 12 if e else 8)
            if p.w & c.srcC:
                if not (p.w == c.srcC and p.passes == c.passes):
                    n = max(n, 10 if e else 6)
            elif p.w & c.w:
                n = max(n, 12 if e else 8)
        elif c.kind in ('valu', 'ds', 'vmem'):
            if p.w & (c.r | c.w):
                n = max(n, 12 if e else 8)
            if c.kind == 'valu' and (p.srcC & c.w):
                n = max(n, 7 if e else 3)
    elif p.kind == 'valu':
        vw = vec(p.w)
        sw = sca(p.w)
        if c.kind == 'mfma':
            if vw & c.r:
                n = max(n, 3 if p.is_dot() else 2)
            if ('x', 'exec') in p.w:
                n = max(n, 4)
        if c.kind == 'valu':
            cb = c.mn
            if vw & c.r:
                if cb.startswith('v_readlane') or cb.startswith('v_readfirstlane'):
                    n = max(n, 1)
                if cb.startswith('v_permlane') or c.is_dpp():
                    n = max(n, 2)
                if p.is_trans() and not c.is_trans():
                    n = max(n, 1)
                if 'sdwa' in p.mn or any(f.startswith('op_sel') for f in p.flags):
                    n = max(n, 1)
            if p.is_dot() and (vw & (c.r | c.w)):
                if not (c.mn == p.mn and not (vw & (c.r - c.w))):
                    n = max(n, 3)
            if sw & c.r:
                n = max(n, 4 if (cb.startswith('v_readlane') or cb.startswith('v_writelane')) else 2)
            if ('x', 'exec') in p.w:
                n = max(n, 5 if c.is_dpp() else (4 if cb.startswith('v_read') or cb.startswith('v_perml') else 0))
        if c.kind in ('vmem', 'ds'):
            if sw & c.r:
                n = max(n, 5)
            if p.is_dot() and (vw & c.r):
                n = max(n, 3)
        if c.kind in ('salu', 'smem') and (sw & c.r):
            n = max(n, 1)
    elif p.kind == 'salu':
        if ('x', 'm0') in p.w and 'ldsdma' in c.flags:
            n = max(n, 1)
    elif p.kind == 'vmem':
        if p.stdata and (p.stdata & c.w):
            n = max(n, 2)
    return n


MAXLOOK = 14


class Asm:
    def __init__(self):
        self.out = []
        self.hist = []
        self.vm = []
        self.lg = []
        self.smem = False
        self.nlabel = 0
        self.count = 0
        self.bytes_est = 0

    def raw(self, s):
        self.out.append(s)

    def comment(self, s):
        self.out.append('    ; ' + s)

    def _push(self, ins):
        self.out.append('    ' + ins.text)
        self.hist.append(ins)
        if len(self.hist) > 40:
            self.hist = self.hist[-24:]
        self.count += 1

    def nop(self, n):
        while n > 0:
            k = min(n, 16)
            self._push(Ins(f's_nop {k - 1}'))
            n -= k

    def __call__(self, text, tag=None):
        for line in text.strip().split('\n'):
            line = line.strip()
            if not line or line.startswith(';'):
                continue
            self.ins(line, tag)

    def ins(self, text, tag=None):
        c = Ins(text)
        dist = 0
        pad = 0
        for p in reversed(self.hist):
            if dist >= MAXLOOK:
                break
            n = need(p, c)
            pad = max(pad, n - dist)
            dist += p.states
        if pad > 0:
            self.nop(pad)
        if c.mn.startswith('s_cbranch') or c.mn == 's_branch':
            self.flush()
        self._push(c)
        if c.kind == 'vmem':
            self.vm.append(tag)
            assert len(self.vm) <= 63, 'more than 63 vmem ops outstanding: ' + text
        elif c.kind == 'ds':
            self.lg.append(tag)
        elif c.kind == 'smem':
            self.smem = True

    def flush(self):
        dist = 0
        pad = 0
        for p in reversed(self.hist):
            if dist >= MAXLOOK:
                break
            n = 0
            if p.kind == 'mfma':
                n = 12 if p.passes == 8 else 8
            elif p.kind == 'valu':
                n = 5 if (sca(p.w) or ('x', 'exec') in p.w) else (3 if p.is_dot() else 2)
            elif p.kind == 'salu' and ('x', 'm0') in p.w:
                n = 1
            elif p.kind == 'vmem' and p.stdata:
                n = 2
            pad = max(pad, n - dist)
            dist += p.states
        if pad > 0:
            self.nop(pad)

    def label(self, name):
        self.flush()
        self.out.append(name + ':')

    def newlabel(self, stem):
        self.nlabel += 1
        return f'L_{stem}_{self.nlabel}'

    def wait_vm(self, tag):
        idx = -1
        for i, t in enumerate(self.vm):
            if t == tag:
                idx = i
        if idx < 0:
            return
        n = len(self.vm) - 1 - idx
        self._push(Ins(f's_waitcnt vmcnt({n})'))
        self.vm = self.vm[idx + 1:]

    def wait_vm_all(self):
        self._push(Ins('s_waitcnt vmcnt(0)'))
        self.vm = []

    def wait_lg(self, tag):
        assert not self.smem
        idx = -1
        for i, t in enumerate(self.lg):
            if t == tag:
                idx = i
        if idx < 0:
            return
        n = len(self.lg) - 1 - idx
        if n > 15:
            n = 15
            self._push(Ins(f's_waitcnt lgkmcnt({n})'))
            self.lg = self.lg[len(self.lg) - n:]
            return
        self._push(Ins(f's_waitcnt lgkmcnt({n})'))
        self.lg = self.lg[idx + 1:]

    def wait_lg_all(self):
        self._push(Ins('s_waitcnt lgkmcnt(0)'))
        self.lg = []
        self.smem = False

    def wait_both(self, vtag=None, ltag=None):
        if vtag is not None:
            self.wait_vm(vtag)
        if ltag is not None:
            self.wait_lg(ltag)

    def barrier(self):
        self('s_barrier')

    def text(self):
        return '\n'.join(self.out) + '\n'
```

```python
import struct
import sys
from asmlib import Asm

S, D, F = 2048, 512, 1792
MB = 1 << 20
WS_XF = 0 * MB
WS_QF = [2 * MB, 4 * MB]
WS_HF = [6 * MB, 8 * MB]
WS_UF = [10 * MB, 12 * MB]
WS_X1 = [14 * MB, 16 * MB]
WS_KV = [18 * MB, 18 * MB + 65536]
WS_ST = [19 * MB, 19 * MB + 262144]
WS_SIZE = 24 * MB
KV_PITCH = 2304

SRD = dict(X=32, WQKV=36, WO=40, W1=44, B1=48, W2=52, B2=56, OUT=60, DBG=64, WS=68)
SRD_SIZE = dict(X=S * D * 2, WQKV=D * 3 * D * 2, WO=D * D * 2, W1=S * F * 2, B1=F * 2, W2=F * S * 2, B2=S * 2,
                OUT=S * D * 2, DBG=256, WS=WS_SIZE)
SRD_PTR = dict(X=8, WQKV=10, WO=12, W1=16, B1=18, W2=20, B2=22, OUT=24, DBG=26, WS=28)


def srd(n):
    b = SRD[n]
    return f's[{b}:{b + 3}]'


def f32(x):
    return '0x%08x' % struct.unpack('<I', struct.pack('<f', x))[0]


def vr(a, n=1):
    return f'v{a}' if n == 1 else f'v[{a}:{a + n - 1}]'


LOG2E = 1.4426950408889634
LN2 = 0.6931471805599453

sW = 3
sXCD, sJ, sQ, sDH = 72, 73, 74, 75
sI, sT, sC = 76, 77, 78
sT0, sT1, sT2, sT3 = 80, 81, 82, 83
sW0, sW1 = 84, 85
sMLO = 86
sMB4 = 88
sSAVE = 90
sK0, sK1, sK2, sK3 = 92, 93, 94, 95
sCNT = 96
vL, vL16, vTR, vH = 1, 2, 3, 4


def prologue(A, name, srds, nwg=256):
    A.raw(f'.text\n.globl {name}\n.p2align 8\n.type {name},@function\n{name}:')
    A(f's_cmp_ge_u32 s2, {nwg}')
    A(f's_cbranch_scc1 L_end_{name}')
    A('s_load_dwordx16 s[8:23], s[0:1], 0')
    A('s_load_dwordx4 s[24:27], s[0:1], 64')
    A('s_load_dwordx2 s[28:29], s[0:1], 80')
    A(f'v_and_b32 v{vL}, 63, v0')
    A('v_lshrrev_b32 v5, 6, v0')
    A(f'v_lshlrev_b32 v{vL16}, 4, v{vL}')
    A(f'v_readfirstlane_b32 s{sW}, v5')
    A(f'v_lshrrev_b32 v{vH}, 5, v{vL}')
    A(f'v_bfe_u32 v5, v{vL}, 2, 2')
    A(f'v_lshl_add_u32 v5, v{vH}, 2, v5')
    A('v_lshlrev_b32 v5, 6, v5')
    A(f'v_bfe_u32 v6, v{vL}, 4, 1')
    A('v_lshl_add_u32 v5, v6, 5, v5')
    A(f'v_and_b32 v6, 3, v{vL}')
    A(f'v_lshl_add_u32 v{vTR}, v6, 3, v5')
    A(f's_and_b32 s{sXCD}, s2, 7')
    A(f's_lshr_b32 s{sJ}, s2, 3')
    A(f's_lshr_b32 s{sQ}, s{sXCD}, 1')
    A(f's_and_b32 s{sDH}, s{sXCD}, 1')
    A(f's_and_b32 s{sW0}, s{sW}, 1')
    A(f's_lshr_b32 s{sW1}, s{sW}, 1')
    A(f's_mov_b32 s{sMLO}, -1')
    A(f's_mov_b32 s{sMLO + 1}, 0')
    A(f's_mov_b32 s{sMB4}, 0xffff0000')
    A(f's_mov_b32 s{sMB4 + 1}, 0xffff0000')
    A(f's_and_b32 s{sT0}, s{sJ}, 3')
    A(f's_lshl_b32 s{sI}, s{sDH}, 2')
    A(f's_add_u32 s{sI}, s{sI}, s{sT0}')
    A(f's_lshr_b32 s{sT0}, s{sJ}, 2')
    A(f's_lshl_b32 s{sT}, s{sQ}, 3')
    A(f's_add_u32 s{sT}, s{sT}, s{sT0}')
    A(f's_mul_i32 s{sC}, s{sQ}, 7')
    A(f's_add_u32 s{sC}, s{sC}, s{sT0}')
    A.wait_lg_all()
    for n in srds:
        b, p = SRD[n], SRD_PTR[n]
        A(f's_mov_b32 s{b}, s{p}')
        A(f's_and_b32 s{b + 1}, s{p + 1}, 0xffff')
        A(f's_mov_b32 s{b + 2}, {SRD_SIZE[n]}')
        A(f's_mov_b32 s{b + 3}, 0x20000')


def epilogue(A, name):
    A.label(f'L_end_{name}')
    A('s_endpgm')
    A.vm, A.lg = [], []


def descriptor(name, vgpr=256, agpr=0):
    return f'''.section .rodata,"a"
.p2align 6
.amdhsa_kernel {name}
  .amdhsa_next_free_vgpr {vgpr + agpr}
  .amdhsa_next_free_sgpr 102
  .amdhsa_accum_offset {vgpr}
  .amdhsa_group_segment_fixed_size 0
  .amdhsa_kernarg_size 88
  .amdhsa_user_sgpr_count 2
  .amdhsa_user_sgpr_kernarg_segment_ptr 1
  .amdhsa_system_sgpr_workgroup_id_x 1
  .amdhsa_float_denorm_mode_32 3
.end_amdhsa_kernel
'''


def cross_half_sum(A, v, t):
    A(f'v_mov_b32 v{t}, v{v}')
    A(f'v_permlane32_swap_b32 v{v}, v{t}')
    A(f'v_add_f32 v{v}, v{v}, v{t}')


def std_to_pi(A, f):
    A(f'v_permlane32_swap_b32 v{f}, v{f + 2}')
    A(f'v_permlane32_swap_b32 v{f + 1}, v{f + 3}')


def dma64_voffs(A, pitch, v0):
    A(f'v_bfe_u32 v5, v{vL}, 2, 3')
    A(f's_mov_b32 s{sT0}, {pitch}')
    A(f'v_mul_lo_u32 v5, v5, s{sT0}')
    A(f'v_and_b32 v6, 3, v{vL}')
    A(f'v_lshl_add_u32 v6, v{vH}, 2, v6')
    A(f'v_lshl_add_u32 v{v0}, v6, 4, v5')
    for j in range(1, 4):
        A(f'v_add_u32 v{v0 + j}, {j * (8 * pitch - 1024)}, v{v0}')


def reduce4(A, acc, out, tmp, vOwn, vRd):
    for a in (1, 2, 3):
        for g in range(4):
            A(f'ds_write_b128 v{vOwn}, {vr(acc + 16 * a + 4 * g, 4)} offset:{(a - 1) * 4096 + g * 1024}')
    A.wait_lg_all()
    A.barrier()
    dst = [out, tmp, tmp + 16]
    for a in (1, 2, 3):
        for g in range(4):
            A(f'ds_read_b128 {vr(dst[a - 1] + 4 * g, 4)}, v{vRd + a - 1} offset:{g * 1024}', tag=('rd', a, g))
    for g in range(4):
        A.wait_lg(('rd', 1, g))
        for i in range(4):
            A(f'v_add_f32 v{out + 4 * g + i}, v{out + 4 * g + i}, v{acc + 4 * g + i}')
    for g in range(4):
        A.wait_lg(('rd', 2, g))
        for i in range(4):
            A(f'v_add_f32 v{out + 4 * g + i}, v{out + 4 * g + i}, v{tmp + 4 * g + i}')
    for g in range(4):
        A.wait_lg(('rd', 3, g))
        for i in range(4):
            A(f'v_add_f32 v{out + 4 * g + i}, v{out + 4 * g + i}, v{tmp + 16 + 4 * g + i}')


def reduce_addrs(A, region, vOwn, vRd):
    A(f's_mul_i32 s{sT0}, s{sW}, {region}')
    A(f'v_add_u32 v{vOwn}, s{sT0}, v{vL16}')
    for a in (1, 2, 3):
        A(f's_xor_b32 s{sT0}, s{sW}, {a}')
        A(f's_mul_i32 s{sT0}, s{sT0}, {region}')
        A(f's_add_u32 s{sT0}, s{sT0}, {(a - 1) * 4096}')
        A(f'v_add_u32 v{vRd + a - 1}, s{sT0}, v{vL16}')


def k_init(A, name):
    prologue(A, name, ['WS'])
    A('s_lshl_b32 s4, s2, 8')
    A('v_add_u32 v5, s4, v0')
    A('v_lshlrev_b32 v6, 3, v5')
    A('v_mov_b32 v8, -1')
    A('v_mov_b32 v9, -1')
    A(f's_mov_b32 s5, {WS_ST[0]}')
    A(f'buffer_store_dwordx2 v[8:9], v6, {srd("WS")}, s5 offen')
    A('v_lshlrev_b32 v6, 2, v5')
    A('v_mov_b32 v10, 0')
    A(f's_mov_b32 s5, {WS_KV[0]}')
    A('s_cmp_ge_u32 s2, 128')
    A(f's_cbranch_scc1 L_skip_{name}')
    A(f'buffer_store_dword v10, v6, {srd("WS")}, s5 offen')
    A.label(f'L_skip_{name}')
    A.wait_vm_all()
    epilogue(A, name)


def phase1(A, layer):
    XA, aK, aV, aQ = 16, 144, 160, 176
    BF = 192
    S1, S2 = 208, 210
    T = 216
    vTRb = 7
    vW = 8
    vONE = 12
    sP, sTB = sK0, sK1
    XST = 98304
    A(f's_and_b32 s{sT0}, s{sJ}, 3')
    A(f's_lshl_b32 s{sTB}, s{sQ}, 2')
    A(f's_add_u32 s{sTB}, s{sTB}, s{sT0}')
    A(f's_lshl_b32 s{sTB}, s{sTB}, 2')
    A(f's_add_u32 s{sTB}, s{sTB}, s{sW}')
    A(f's_lshr_b32 s{sT0}, s{sJ}, 2')
    A(f's_lshl_b32 s{sP}, s{sDH}, 3')
    A(f's_add_u32 s{sP}, s{sP}, s{sT0}')
    A(f'v_add_u32 v{vTRb}, 49152, v{vTR}')
    for i in range(4):
        A(f'v_mov_b32 v{vONE + i}, 0x3f803f80')
    sST = sK2
    A(f's_lshl_b32 s{sST}, s{sW}, 14')
    A(f's_add_u32 s{sST}, s{sST}, {XST}')
    if layer == 0:
        A(f'v_lshrrev_b32 v5, 3, v{vL}')
        A(f'v_and_b32 v6, 7, v{vL}')
        A('v_xor_b32 v6, v6, v5')
        A('v_lshlrev_b32 v5, 10, v5')
        A('v_lshl_add_u32 v9, v6, 4, v5')
        A('v_xor_b32 v10, 16, v9')
        A(f's_lshl_b32 s{sT1}, s{sTB}, 15')
        for cb in range(4):
            for rb in range(4):
                A(f's_add_u32 m0, s{sST}, {(cb * 4 + rb) * 1024}')
                A(f's_add_u32 s{sT0}, s{sT1}, {rb * 8192 + cb * 128}')
                A(f'buffer_load_dwordx4 v{9 + (rb & 1)}, {srd("X")}, s{sT0} offen lds', tag='x0')
        for cb in range(4):
            for rb in range(4):
                A(f's_add_u32 s{sT0}, s{sT1}, {rb * 8192 + cb * 128 + 512}')
                A(f'buffer_load_dwordx4 {vr(XA + 64 + 4 * (cb * 4 + rb), 4)}, v{9 + (rb & 1)}, {srd("X")}, s{sT0} offen',
                  tag='x1')
    else:
        A(f's_lshl_b32 s{sT1}, s{sTB}, 15')
        A(f's_add_u32 s{sT1}, s{sT1}, {WS_XF}')
        for ks in range(32):
            if ks % 4 == 0 and ks:
                A(f's_add_u32 s{sT1}, s{sT1}, 4096')
            A(f'buffer_load_dwordx4 {vr(XA + 4 * ks, 4)}, v{vL16}, {srd("WS")}, s{sT1} offen offset:{(ks % 4) * 1024} sc1',
              tag=('x', ks))
    A(f'v_lshrrev_b32 v5, 2, v{vL}')
    A('v_mul_u32_u24 v5, 3072, v5')
    A(f'v_and_b32 v6, 3, v{vL}')
    A(f'v_lshl_add_u32 v{vW}, v6, 4, v5')
    A(f's_mul_i32 s{sT1}, s{sW}, {8 * 49152}')
    A(f's_lshl_b32 s{sT0}, s{sP}, 6')
    A(f's_add_u32 s{sT1}, s{sT1}, s{sT0}')
    A(f's_mul_i32 s{sT2}, s{sW}, {8 * 3072}')
    for k in range(8):
        A(f's_add_u32 m0, s{sT2}, {k * 3072}')
        A(f's_add_u32 s{sT0}, s{sT1}, {k * 49152}')
        for g in range(3):
            A(f'buffer_load_dwordx4 v{vW}, {srd("WQKV")}, s{sT0} offen offset:{g * 1024} lds', tag='w')
    if layer == 0:
        A(f'v_and_b32 v5, 7, v{vL}')
        A(f'v_bfe_u32 v6, v{vL}, 3, 2')
        A('v_lshlrev_b32 v11, 10, v6')
        A('v_lshl_add_u32 v11, v5, 7, v11')
        A(f'v_add_u32 v11, s{sST}, v11')
        A('v_and_b32 v6, 1, v6')
        A('v_xor_b32 v5, v5, v6')
        A(f'v_xor_b32 v5, v5, v{vH}')
        for m in range(4):
            A(f'v_xor_b32 v6, {2 * m}, v5')
            A(f'v_lshl_add_u32 v{T + m}, v6, 4, v11')
        A(f'v_add_u32 v{T + 4}, s{sST}, v{vL16}')
        A.wait_vm('x0')
        for ks in range(16):
            A(f'ds_read_b128 {vr(XA + 4 * ks, 4)}, v{T + (ks & 3)} offset:{(ks >> 2) * 4096}')
        A.wait_vm('x1')
        A.wait_lg_all()
        for b in range(16):
            A(f'ds_write_b128 v{T + 4}, {vr(XA + 64 + 4 * b, 4)} offset:{b * 1024}')
        A.wait_lg_all()
        for ks in range(16):
            A(f'ds_read_b128 {vr(XA + 64 + 4 * ks, 4)}, v{T + (ks & 3)} offset:{(ks >> 2) * 4096}')
        for ks in range(16):
            std_to_pi(A, XA + 4 * ks)
        A.wait_lg_all()
        for ks in range(16, 32):
            std_to_pi(A, XA + 4 * ks)
    A.wait_vm('w')
    A.barrier()

    def wread(dst, ks, g, tag):
        off = ks * 3072 + g * 1024
        base = vTR
        if off >= 49152:
            off -= 49152
            base = vTRb
        A(f'ds_read_b64_tr_b16 {vr(dst, 2)}, v{base} offset:{off}', tag=tag)
        A(f'ds_read_b64_tr_b16 {vr(dst + 2, 2)}, v{base} offset:{off + 512}', tag=tag)

    A(f'v_add_u32 v{T}, s{sT2}, v{vTR}')
    accs = [aQ, aK, aV]
    for k in range(8):
        for g in range(3):
            d = BF + 4 * ((3 * k + g) % 4)
            A(f'ds_read_b64_tr_b16 {vr(d, 2)}, v{T} offset:{k * 3072 + g * 1024}', tag=('c', k, g))
            A(f'ds_read_b64_tr_b16 {vr(d + 2, 2)}, v{T} offset:{k * 3072 + g * 1024 + 512}', tag=('c', k, g))
            A.wait_lg(('c', k, g))
            c = '0' if k == 0 else vr(accs[g], 16)
            A(f'v_mfma_f32_32x32x16_bf16 {vr(accs[g], 16)}, {vr(vONE, 4)}, {vr(d, 4)}, {c}')
    A(f'v_lshlrev_b32 v{T}, 2, v{vL}')
    A(f'v_add_u32 v{T + 1}, s{sST}, v{T}')
    for g in range(3):
        A(f'ds_write_b32 v{T + 1}, v{accs[g]} offset:{g * 256}')
    A.wait_lg_all()
    A.barrier()
    A(f'v_add_u32 v{T + 1}, {XST}, v{T}')
    for w in range(4):
        for g in range(3):
            A(f'ds_read_b32 v{T + 4 + 4 * g + w}, v{T + 1} offset:{w * 16384 + g * 256}')
    A.wait_lg_all()
    EW = 240
    for g in range(3):
        b = T + 4 + 4 * g
        A(f'v_add_f32 v{b}, v{b}, v{b + 1}')
        A(f'v_add_f32 v{b + 2}, v{b + 2}, v{b + 3}')
        A(f'v_add_f32 v{b}, v{b}, v{b + 2}')
        A(f'v_cvt_pk_bf16_f32 v{EW + 4 * g}, v{b}, v{b}')
        A(f'v_and_b32 v{b + 1}, 0xffff0000, v{EW + 4 * g}')
        A(f'v_sub_f32 v{b + 1}, v{b}, v{b + 1}')
        A(f'v_cvt_pk_bf16_f32 v{EW + 4 * g + 1}, v{b + 1}, 0')
        A(f'v_mov_b32 v{EW + 4 * g + 2}, 0')
        A(f'v_mov_b32 v{EW + 4 * g + 3}, 0')
    for i in range(4):
        A(f'v_mov_b32 v{S1 + i}, 0')

    wread(BF, 0, 1, ('b', 0))
    wread(BF + 4, 0, 2, ('b', 0))
    for ks in range(32):
        cur = BF + 8 * (ks & 1)
        nxt = BF + 8 * ((ks + 1) & 1)
        if ks + 1 < 32:
            wread(nxt, ks + 1, 1, ('b', ks + 1))
            wread(nxt + 4, ks + 1, 2, ('b', ks + 1))
        if layer != 0:
            A.wait_vm(('x', ks))
        A.wait_lg(('b', ks))
        x = XA + 4 * ks
        A(f'v_mfma_f32_32x32x16_bf16 {vr(aK, 16)}, {vr(x, 4)}, {vr(cur, 4)}, {"0" if ks == 0 else vr(aK, 16)}')
        for i in range(4):
            A(f'v_dot2c_f32_bf16 v{S1 + (i & 1)}, v{x + i}, v{vONE}')
        A(f'v_mfma_f32_32x32x16_bf16 {vr(aV, 16)}, {vr(x, 4)}, {vr(cur + 4, 4)}, {"0" if ks == 0 else vr(aV, 16)}')
        for i in range(4):
            A(f'v_dot2c_f32_bf16 v{S2 + (i & 1)}, v{x + i}, v{x + i}')
    wread(BF, 0, 0, ('q', 0))
    wread(BF + 4, 1, 0, ('q', 1))
    A(f'v_add_f32 v{S1}, v{S1}, v{S1 + 1}')
    A(f'v_add_f32 v{S2}, v{S2}, v{S2 + 1}')
    cross_half_sum(A, S1, S1 + 1)
    cross_half_sum(A, S2, S2 + 1)
    vM, vR, vRL = S1, S2, S2 + 1
    A(f'v_mul_f32 v{vM}, {f32(-1.0 / D)}, v{S1}')
    A(f'v_mul_f32 v{S2}, {f32(1.0 / D)}, v{S2}')
    A(f'v_fma_f32 v{S2}, -v{vM}, v{vM}, v{S2}')
    A(f'v_max_f32 v{S2}, 0, v{S2}')
    A(f'v_add_f32 v{S2}, {f32(1e-5)}, v{S2}')
    A(f'v_rsq_f32 v{vR}, v{S2}')
    EX = 252
    A(f'v_cvt_pk_bf16_f32 v{T}, v{vM}, v{vM}')
    A(f'v_and_b32 v{T + 1}, 0xffff0000, v{T}')
    A(f'v_sub_f32 v{T + 1}, v{vM}, v{T + 1}')
    A(f'v_cvt_pk_bf16_f32 v{T + 1}, v{vM}, v{T + 1}')
    A(f'v_and_b32 v{T}, 0xffff, v{T}')
    A(f'v_cndmask_b32 v{EX}, 0, v{T + 1}, s[{sMLO}:{sMLO + 1}]')
    A(f'v_cndmask_b32 v{EX + 1}, 0, v{T}, s[{sMLO}:{sMLO + 1}]')
    A(f'v_mov_b32 v{EX + 2}, 0')
    A(f'v_mov_b32 v{EX + 3}, 0')
    A(f'v_mul_f32 v{vRL}, {f32(LOG2E)}, v{vR}')
    A(f'v_and_b32 v{T}, 31, v{vL}')
    A(f'v_lshlrev_b32 v{T}, 2, v{T}')
    A(f'v_add_u32 v{T}, s{sST}, v{T}')
    A(f'ds_write_b32 v{T}, v{vR} offset:1024')
    A(f'ds_write_b32 v{T}, v{vRL} offset:1152')
    A(f'v_mfma_f32_32x32x16_bf16 {vr(aK, 16)}, {vr(EX, 4)}, {vr(EW + 4, 4)}, {vr(aK, 16)}')
    A(f'v_mfma_f32_32x32x16_bf16 {vr(aV, 16)}, {vr(EX, 4)}, {vr(EW + 8, 4)}, {vr(aV, 16)}')
    A(f'v_lshlrev_b32 v{T}, 4, v{vH}')
    A(f'v_add_u32 v{T}, s{sST}, v{T}')
    A.wait_lg_all()
    RB, RLB = T + 4, aQ
    for g in range(4):
        A(f'ds_read_b128 {vr(RLB + 4 * g, 4)}, v{T} offset:{1152 + 32 * g}')
    for g in range(4):
        A(f'ds_read_b128 {vr(RB + 4 * g, 4)}, v{T} offset:{1024 + 32 * g}')
    A(f's_mov_b32 s{sT0}, {f32(LN2)}')
    A.wait_lg_all()
    for i in range(16):
        A(f'v_mul_f32 v{aK + i}, v{aK + i}, v{RLB + i}')
    for i in range(16):
        A(f'v_exp_f32_e64 v{RLB + i}, v{aK + i} clamp')
        A(f'v_mul_f32 v{aV + i}, v{aV + i}, v{RB + i}')
    for i in range(16):
        A(f'v_add_f32 v{RLB + i}, {f32(1e-6)}, v{RLB + i}')
        A(f'v_max_f32 v{aK + i}, 0, v{aK + i}')
    for i in range(16):
        A(f'v_fma_f32 v{aK + i}, v{aK + i}, s{sT0}, v{RLB + i}')
    PK, VV = RB, RB + 8
    for i in range(8):
        A(f'v_cvt_pk_bf16_f32 v{PK + i}, v{aK + 2 * i}, v{aK + 2 * i + 1}')
    for i in range(8):
        A(f'v_cvt_pk_bf16_f32 v{VV + i}, v{aV + 2 * i}, v{aV + 2 * i + 1}')
    A(f'v_mfma_f32_32x32x16_bf16 {vr(aK, 16)}, {vr(PK, 4)}, {vr(VV, 4)}, 0')
    A(f'v_mfma_f32_32x32x16_bf16 {vr(aV, 16)}, {vr(vONE, 4)}, {vr(PK, 4)}, 0')
    A(f'v_mfma_f32_32x32x16_bf16 {vr(aK, 16)}, {vr(PK + 4, 4)}, {vr(VV + 4, 4)}, {vr(aK, 16)}')
    A(f'v_mfma_f32_32x32x16_bf16 {vr(aV, 16)}, {vr(vONE, 4)}, {vr(PK + 4, 4)}, {vr(aV, 16)}')
    A(f'v_lshlrev_b32 v{T}, 5, v{vL}')
    A(f'v_add_u32 v{T + 1}, s{sST}, v{T}')
    A(f'v_lshlrev_b32 v{T + 2}, 2, v{vL}')
    A(f'v_add_u32 v{T + 3}, s{sST}, v{T + 2}')
    for j in range(8):
        A(f'v_cndmask_b32 v{aQ + j}, v{aK + j}, v{aK + 8 + j}, s[{sMB4}:{sMB4 + 1}]')
    A(f'ds_write_b128 v{T + 1}, {vr(aQ, 4)} offset:2048')
    A(f'ds_write_b128 v{T + 1}, {vr(aQ + 4, 4)} offset:2064')
    A(f'ds_write_b32 v{T + 3}, v{aV} offset:4096')
    A.wait_lg_all()
    A.barrier()
    A(f's_lshl_b32 s{sT0}, s{sW}, 3')
    A(f's_add_u32 s{sT0}, s{sT0}, {XST + 2048}')
    A(f'v_add_u32 v{T + 1}, s{sT0}, v{T}')
    A(f'v_add_u32 v{T + 3}, {XST + 4096}, v{T + 2}')
    for w in range(4):
        A(f'ds_read_b64 {vr(aK + 2 * w, 2)}, v{T + 1} offset:{w * 16384}')
    for w in range(4):
        A(f'ds_read_b32 v{aK + 8 + w}, v{T + 3} offset:{w * 16384}')
    A(f's_mul_i32 s{sT1}, s{sP}, {KV_PITCH}')
    A(f's_add_u32 s{sT1}, s{sT1}, {WS_KV[layer]}')
    A(f's_lshl_b32 s{sT0}, s{sW}, 9')
    A(f's_add_u32 s{sT0}, s{sT0}, s{sT1}')
    A.wait_lg_all()
    for c in range(2):
        A(f'v_add_f32 v{aK + c}, v{aK + c}, v{aK + 2 + c}')
        A(f'v_add_f32 v{aK + 4 + c}, v{aK + 4 + c}, v{aK + 6 + c}')
        A(f'v_add_f32 v{aK + c}, v{aK + c}, v{aK + 4 + c}')
    A(f'v_add_f32 v{aK + 8}, v{aK + 8}, v{aK + 9}')
    A(f'v_add_f32 v{aK + 10}, v{aK + 10}, v{aK + 11}')
    A(f'v_add_f32 v{aK + 8}, v{aK + 8}, v{aK + 10}')
    A(f'buffer_atomic_add_f32 v{aK}, v{T + 2}, {srd("WS")}, s{sT0} offen')
    A(f'buffer_atomic_add_f32 v{aK + 1}, v{T + 2}, {srd("WS")}, s{sT0} offen offset:256')
    lz = A.newlabel('noz')
    A(f's_cmp_lg_u32 s{sW}, 0')
    A(f's_cbranch_scc1 {lz}')
    A(f's_mov_b64 exec, s[{sMLO}:{sMLO + 1}]')
    A(f'buffer_atomic_add_f32 v{aK + 8}, v{T + 2}, {srd("WS")}, s{sT1} offen offset:2048')
    A('s_mov_b64 exec, -1')
    A.label(lz)
    for ks in range(32):
        if ks + 2 < 32:
            wread(BF + 4 * ((ks + 2) & 3), ks + 2, 0, ('q', ks + 2))
        A.wait_lg(('q', ks))
        A(f'v_mfma_f32_32x32x16_bf16 {vr(aQ, 16)}, {vr(BF + 4 * (ks & 3), 4)}, {vr(XA + 4 * ks, 4)}, '
          f'{"0" if ks == 0 else vr(aQ, 16)}')
    A(f'v_mfma_f32_32x32x16_bf16 {vr(aQ, 16)}, {vr(EW, 4)}, {vr(EX, 4)}, {vr(aQ, 16)}')
    A(f's_lshl_b32 s{sT0}, s{sTB}, 15')
    A(f's_lshl_b32 s{sT1}, s{sP}, 11')
    A(f's_add_u32 s{sT0}, s{sT0}, s{sT1}')
    A(f's_add_u32 s{sT0}, s{sT0}, {WS_QF[layer]}')
    for i in range(16):
        A(f'v_mul_f32 v{aK + i}, v{aQ + i}, v{vRL}')
    for i in range(16):
        A(f'v_exp_f32_e64 v{aK + i}, v{aK + i} clamp')
        A(f'v_max_f32 v{aQ + i}, 0, v{aQ + i}')
    for i in range(16):
        A(f'v_add_f32 v{aK + i}, {f32(1e-6)}, v{aK + i}')
    for i in range(16):
        A(f'v_fma_f32 v{aQ + i}, v{aQ + i}, v{vR}, v{aK + i}')
    for i in range(8):
        A(f'v_cvt_pk_bf16_f32 v{aV + i}, v{aQ + 2 * i}, v{aQ + 2 * i + 1}')
    A(f'buffer_store_dwordx4 {vr(aV, 4)}, v{vL16}, {srd("WS")}, s{sT0} offen sc0 sc1')
    A(f'buffer_store_dwordx4 {vr(aV + 4, 4)}, v{vL16}, {srd("WS")}, s{sT0} offen offset:1024 sc0 sc1')
    A.wait_vm_all()


def load_resid(A, layer_in, dst, tag):
    if layer_in == 0:
        A(f'v_and_b32 v5, 31, v{vL}')
        A('v_lshlrev_b32 v5, 10, v5')
        A(f'v_lshl_add_u32 v5, v{vH}, 4, v5')
        A(f's_lshl_b32 s{sT0}, s{sT}, 1')
        A(f's_add_u32 s{sT0}, s{sT0}, s{sW1}')
        A(f's_lshl_b32 s{sT0}, s{sT0}, 15')
        A(f's_lshl_b32 s{sT1}, s{sI}, 1')
        A(f's_add_u32 s{sT1}, s{sT1}, s{sW0}')
        A(f's_lshl_b32 s{sT1}, s{sT1}, 6')
        A(f's_add_u32 s{sT0}, s{sT0}, s{sT1}')
        A(f'buffer_load_dwordx4 {vr(dst, 4)}, v5, {srd("X")}, s{sT0} offen', tag=tag)
        A(f'buffer_load_dwordx4 {vr(dst + 4, 4)}, v5, {srd("X")}, s{sT0} offen offset:32', tag=tag)
    else:
        xf_addr(A, layer_in, sT0)
        A(f'buffer_load_dwordx4 {vr(dst, 4)}, v{vL16}, {srd("WS")}, s{sT0} offen sc1', tag=tag)
        A(f'buffer_load_dwordx4 {vr(dst + 4, 4)}, v{vL16}, {srd("WS")}, s{sT0} offen offset:1024 sc1', tag=tag)


def xf_addr(A, base, dst):
    A(f's_lshl_b32 s{dst}, s{sT}, 1')
    A(f's_add_u32 s{dst}, s{dst}, s{sW1}')
    A(f's_lshl_b32 s{dst}, s{dst}, 5')
    A(f's_lshl_b32 s{sT1}, s{sI}, 2')
    A(f's_add_u32 s{dst}, s{dst}, s{sT1}')
    A(f's_lshl_b32 s{sT1}, s{sW0}, 1')
    A(f's_add_u32 s{dst}, s{dst}, s{sT1}')
    A(f's_lshl_b32 s{dst}, s{dst}, 10')
    if base == 1:
        base = WS_XF
    if base:
        A(f's_add_u32 s{dst}, s{dst}, {base}')


def phase2(A, layer):
    QF, TT, ZZ, FR, ACC = 16, 80, 112, 144, 176
    OD, OF, WF = 80, 112, 120
    RES = 240
    vD = 8
    vTA, vTB = 12, 13
    vOwn, vRd = 14, 248
    REG = 16384
    dma64_voffs(A, 1024, vD)
    A(f's_lshl_b32 s{sT1}, s{sW}, 17')
    A(f's_lshl_b32 s{sT0}, s{sI}, 7')
    A(f's_add_u32 s{sT1}, s{sT1}, s{sT0}')
    A(f's_lshl_b32 s{sK2}, s{sW}, 14')
    for b in range(4):
        A(f's_add_u32 m0, s{sK2}, {b * 4096}')
        A(f's_add_u32 s{sT0}, s{sT1}, {b * 32768}')
        for j in range(4):
            A(f'buffer_load_dwordx4 v{vD + j}, {srd("WO")}, s{sT0} offen offset:{j * 1024} lds', tag='wo')
    A(f'v_lshlrev_b32 v5, 2, v{vL}')
    A(f'v_bfe_u32 v6, v{vL}, 4, 1')
    A('v_xor_b32 v6, 1, v6')
    A('v_lshlrev_b32 v6, 6, v6')
    A(f'v_lshl_add_u32 v6, v{vH}, 4, v6')
    A(f's_mul_i32 s{sT1}, s{sW}, {4 * KV_PITCH}')
    A(f's_add_u32 s{sT1}, s{sT1}, {WS_KV[layer]}')
    for pp in range(4):
        A(f's_add_u32 s{sT0}, s{sT1}, {pp * KV_PITCH}')
        for j in range(8):
            A(f'buffer_load_dword v{TT + 8 * pp + j}, v5, {srd("WS")}, s{sT0} offen offset:{j * 256} sc1', tag=('kv', pp))
        A(f'buffer_load_dwordx4 {vr(ZZ + 8 * pp, 4)}, v6, {srd("WS")}, s{sT0} offen offset:2048 sc1', tag=('kv', pp))
        A(f'buffer_load_dwordx4 {vr(ZZ + 8 * pp + 4, 4)}, v6, {srd("WS")}, s{sT0} offen offset:2080 sc1', tag=('kv', pp))
        if pp == 0:
            A.wait_vm('wo')
    for an in range(2):
        A(f's_xor_b32 s{sT0}, s{sW1}, {an}')
        A(f's_lshl_b32 s{sT1}, s{sT}, 1')
        A(f's_add_u32 s{sT0}, s{sT0}, s{sT1}')
        A(f's_lshl_b32 s{sT0}, s{sT0}, 15')
        A(f's_lshl_b32 s{sT1}, s{sW}, 13')
        A(f's_add_u32 s{sT0}, s{sT0}, s{sT1}')
        A(f's_add_u32 s{sK0 + an}, s{sT0}, {WS_QF[layer]}')
    for hd in range(8):
        for an in range(2):
            if hd == 4:
                A(f's_add_u32 s{sK0 + an}, s{sK0 + an}, 4096')
            A(f'buffer_load_dwordx4 {vr(QF + 32 * an + 4 * hd, 4)}, v{vL16}, {srd("WS")}, s{sK0 + an} offen '
              f'offset:{(hd % 4) * 1024} sc1', tag=('q', hd, an))
    load_resid(A, layer, RES, 'res')
    A(f's_lshl_b32 s{sT0}, s{sW0}, 9')
    A(f's_add_u32 s{sT0}, s{sT0}, s{sK2}')
    A(f'v_add_u32 v{vTA}, s{sT0}, v{vTR}')
    A(f's_xor_b32 s{sT0}, s{sT0}, 512')
    A(f'v_add_u32 v{vTB}, s{sT0}, v{vTR}')
    reduce_addrs(A, REG, vOwn, vRd)
    mb4 = f's[{sMB4}:{sMB4 + 1}]'
    for pp in range(4):
        A.wait_vm(('kv', pp))
        for i in range(4):
            A(f'v_cvt_pk_bf16_f32 v{TT + 8 * pp + i}, v{TT + 8 * pp + 2 * i}, v{TT + 8 * pp + 2 * i + 1}')
            A(f'v_cvt_pk_bf16_f32 v{ZZ + 8 * pp + i}, v{ZZ + 8 * pp + 2 * i}, v{ZZ + 8 * pp + 2 * i + 1}')
        for i in range(4):
            A(f'v_cndmask_b32 v{FR + 8 * pp + i}, v{TT + 8 * pp + i}, v{ZZ + 8 * pp + i}, {mb4}')
            A(f'v_cndmask_b32 v{FR + 8 * pp + 4 + i}, v{ZZ + 8 * pp + i}, v{TT + 8 * pp + i}, {mb4}')

    def omfma(n):
        hd, an = n >> 1, n & 1
        A.wait_vm(('q', hd, an))
        A(f'v_mfma_f32_32x32x16_bf16 {vr(OD + 16 * (n & 1), 16)}, {vr(FR + 4 * hd, 4)}, {vr(QF + 32 * an + 4 * hd, 4)}, 0')

    def wread(hd):
        d = WF + 8 * (hd & 1)
        for am, b in ((0, vTA), (1, vTB)):
            A(f'ds_read_b64_tr_b16 {vr(d + 4 * am, 2)}, v{b} offset:{hd * 2048}', tag=('w', hd))
            A(f'ds_read_b64_tr_b16 {vr(d + 4 * am + 2, 2)}, v{b} offset:{hd * 2048 + 1024}', tag=('w', hd))

    wread(0)
    omfma(0)
    for n in range(16):
        hd, an = n >> 1, n & 1
        if n + 1 < 16:
            omfma(n + 1)
        if an == 0 and hd + 1 < 8:
            wread(hd + 1)
        od = OD + 16 * (n & 1)
        den, num = (od + 8, od) if hd % 2 == 0 else (od, od + 8)
        A(f'v_add_f32 v{den}, {f32(1e-6)}, v{den}')
        A(f'v_rcp_f32 v{den}, v{den}')
        for i in range(8):
            A(f'v_mul_f32 v{num + i}, v{num + i}, v{den}')
        of = OF + 4 * an
        for i in range(4):
            A(f'v_cvt_pk_bf16_f32 v{of + i}, v{num + 2 * i}, v{num + 2 * i + 1}')
        A.wait_lg(('w', hd))
        for am in range(2):
            a = ACC + 16 * (am + 2 * an)
            A(f'v_mfma_f32_32x32x16_bf16 {vr(a, 16)}, {vr(WF + 8 * (hd & 1) + 4 * am, 4)}, {vr(of, 4)}, '
              f'{"0" if hd == 0 else vr(a, 16)}')
    O, TMP = 16, 32
    reduce4(A, ACC, O, TMP, vOwn, vRd)
    A.wait_vm('res')
    if layer == 0:
        std_to_pi(A, RES)
        std_to_pi(A, RES + 4)
    for i in range(8):
        A(f'v_lshlrev_b32 v{TMP + 2 * i}, 16, v{RES + i}')
        A(f'v_and_b32 v{TMP + 2 * i + 1}, 0xffff0000, v{RES + i}')
    for i in range(16):
        A(f'v_add_f32 v{O + i}, v{O + i}, v{TMP + i}')
    for i in range(8):
        A(f'v_cvt_pk_bf16_f32 v{RES + i}, v{O + 2 * i}, v{O + 2 * i + 1}')
    xf_addr(A, WS_X1[layer], sT0)
    A(f'buffer_store_dwordx4 {vr(RES, 4)}, v{vL16}, {srd("WS")}, s{sT0} offen sc0 sc1')
    A(f'buffer_store_dwordx4 {vr(RES + 4, 4)}, v{vL16}, {srd("WS")}, s{sT0} offen offset:1024 sc0 sc1')
    for i in range(8):
        A(f'v_lshlrev_b32 v{O + 2 * i}, 16, v{RES + i}')
        A(f'v_and_b32 v{O + 2 * i + 1}, 0xffff0000, v{RES + i}')
    P1_, P2_ = TMP, TMP + 1
    A(f'v_add_f32 v{P1_}, v{O}, v{O + 1}')
    A(f'v_mul_f32 v{P2_}, v{O}, v{O}')
    A(f'v_add_f32 v{P1_ + 2}, v{O + 2}, v{O + 3}')
    A(f'v_mul_f32 v{P2_ + 2}, v{O + 1}, v{O + 1}')
    for i in range(2, 16):
        if i >= 4:
            A(f'v_add_f32 v{P1_ + 2 * (i & 1)}, v{P1_ + 2 * (i & 1)}, v{O + i}')
        A(f'v_fmac_f32 v{P2_ + 2 * (i & 1)}, v{O + i}, v{O + i}')
    A(f'v_add_f32 v{P1_}, v{P1_}, v{P1_ + 2}')
    A(f'v_add_f32 v{P2_}, v{P2_}, v{P2_ + 2}')
    cross_half_sum(A, P1_, P1_ + 2)
    cross_half_sum(A, P2_, P2_ + 2)
    A(f'v_and_b32 v{P2_}, 0x7fffffff, v{P2_}')
    A(f's_lshl_b32 s{sK0}, s{sT}, 1')
    A(f's_add_u32 s{sK0}, s{sK0}, s{sW1}')
    A(f's_lshl_b32 s{sK0}, s{sK0}, 12')
    A(f's_add_u32 s{sK0}, s{sK0}, {WS_ST[layer]}')
    A(f's_lshl_b32 s{sT0}, s{sI}, 1')
    A(f's_add_u32 s{sT0}, s{sT0}, s{sW0}')
    A(f's_lshl_b32 s{sT0}, s{sT0}, 8')
    A(f's_add_u32 s{sT0}, s{sT0}, s{sK0}')
    A(f'v_and_b32 v5, 31, v{vL}')
    A('v_lshlrev_b32 v5, 3, v5')
    A(f's_mov_b64 exec, s[{sMLO}:{sMLO + 1}]')
    A(f'buffer_store_dwordx2 {vr(P1_, 2)}, v5, {srd("WS")}, s{sT0} offen sc0 sc1')
    A('s_mov_b64 exec, -1')
    A(f'v_lshl_add_u32 v5, v{vH}, 11, v5')
    A(f's_mov_b32 s{sCNT}, 0')
    PL = TMP + 4
    lp, ld = A.newlabel('poll'), A.newlabel('polled')
    A.label(lp)
    for j in range(8):
        A(f'buffer_load_dwordx2 {vr(PL + 2 * j, 2)}, v5, {srd("WS")}, s{sK0} offen offset:{256 * j} sc1')
    A.wait_vm_all()
    A(f'v_max_u32 v6, v{PL + 1}, v{PL + 3}')
    A(f'v_max3_u32 v6, v6, v{PL + 5}, v{PL + 7}')
    A(f'v_max3_u32 v6, v6, v{PL + 9}, v{PL + 11}')
    A(f'v_max3_u32 v6, v6, v{PL + 13}, v{PL + 15}')
    A('v_cmp_eq_u32 vcc, -1, v6')
    A(f's_add_u32 s{sCNT}, s{sCNT}, 1')
    A(f's_cbranch_vccz {ld}')
    A(f's_cmp_lt_u32 s{sCNT}, 20000')
    A(f's_cbranch_scc1 {lp}')
    A.label(ld)
    for st in (4, 2, 1):
        for j in range(st):
            A(f'v_add_f32 v{PL + 2 * j}, v{PL + 2 * j}, v{PL + 2 * (j + st)}')
            A(f'v_add_f32 v{PL + 2 * j + 1}, v{PL + 2 * j + 1}, v{PL + 2 * (j + st) + 1}')
    cross_half_sum(A, PL, PL + 2)
    cross_half_sum(A, PL + 1, PL + 3)
    M, V = PL, PL + 1
    A(f'v_mul_f32 v{M}, {f32(-1.0 / D)}, v{M}')
    A(f'v_mul_f32 v{V}, {f32(1.0 / D)}, v{V}')
    A(f'v_fma_f32 v{V}, -v{M}, v{M}, v{V}')
    A(f'v_max_f32 v{V}, 0, v{V}')
    A(f'v_add_f32 v{V + 1}, {f32(1e-5)}, v{V}')
    A(f'v_rsq_f32 v{V + 1}, v{V + 1}')
    A(f'v_mul_f32 v{V}, v{V}, v{V + 1}')
    A(f'v_mul_f32 v{V}, v{V}, v{V + 1}')
    A(f'v_add_f32 v{V}, {f32(1e-5)}, v{V}')
    A(f'v_rsq_f32 v{V}, v{V}')
    A(f'v_mul_f32 v{V}, v{V}, v{V + 1}')
    A(f'v_mul_f32 v{M}, v{M}, v{V}')
    for i in range(16):
        A(f'v_fma_f32 v{O + i}, v{O + i}, v{V}, v{M}')
    for i in range(8):
        A(f'v_cvt_pk_bf16_f32 v{O + i}, v{O + 2 * i}, v{O + 2 * i + 1}')
    A(f'v_and_b32 v5, 31, v{vL}')
    A('v_lshlrev_b32 v5, 6, v5')
    A(f'v_lshl_add_u32 v5, v{vH}, 3, v5')
    A(f's_add_u32 s{sT0}, s{sK2}, 12288')
    A(f'v_add_u32 v5, s{sT0}, v5')
    A(f'v_add_u32 v6, s{sT0}, v{vTR}')
    for g in range(4):
        A(f'ds_write_b64 v5, {vr(O + 2 * g, 2)} offset:{16 * g}')
    A.wait_lg_all()
    for k in range(4):
        A(f'ds_read_b64_tr_b16 {vr(TMP + 2 * k, 2)}, v6 offset:{512 * k}')
    A(f's_lshl_b32 s{sT0}, s{sI}, 1')
    A(f's_add_u32 s{sT0}, s{sT0}, s{sW0}')
    A(f's_lshl_b32 s{sT0}, s{sT0}, 7')
    A(f's_lshl_b32 s{sT1}, s{sT}, 2')
    A(f's_add_u32 s{sT0}, s{sT0}, s{sT1}')
    A(f's_lshl_b32 s{sT1}, s{sW1}, 1')
    A(f's_add_u32 s{sT0}, s{sT0}, s{sT1}')
    A(f's_lshl_b32 s{sT0}, s{sT0}, 10')
    A(f's_add_u32 s{sT0}, s{sT0}, {WS_HF[layer]}')
    A.wait_lg_all()
    A(f'buffer_store_dwordx4 {vr(TMP, 4)}, v{vL16}, {srd("WS")}, s{sT0} offen sc0 sc1')
    A(f'buffer_store_dwordx4 {vr(TMP + 4, 4)}, v{vL16}, {srd("WS")}, s{sT0} offen offset:1024 sc0 sc1')
    A.wait_vm_all()


def ksplit_gemm(A, nks, wsrd, pitch, sWoff, sAct, w_is_A, ACC, ring_regs, Dp, R, REG, vD, vTA, vTB, WF):
    assert R % 2 == 0 and R >= Dp + 1

    def dma(ks):
        if ks >= nks or ks % 2:
            return
        A(f's_add_u32 m0, s{sK2}, {(ks % R) * 2048}')
        for j in range(4):
            A(f'buffer_load_dwordx4 v{vD + j}, {srd(wsrd)}, s{sWoff} offen offset:{j * 1024} lds', tag=('w', ks))
        A(f's_add_u32 s{sWoff}, s{sWoff}, {32 * pitch}')

    def act(ks):
        if ks >= nks:
            return
        for a in range(2):
            r = ring_regs + 8 * (ks % Dp) + 4 * a
            A(f'buffer_load_dwordx4 {vr(r, 4)}, v{vL16}, {srd("WS")}, s{sAct + a} offen offset:{(ks % 4) * 1024} sc1',
              tag=('a', ks))
            if ks % 4 == 3:
                A(f's_add_u32 s{sAct + a}, s{sAct + a}, 4096')

    def wread(ks):
        d = WF + 8 * (ks & 1)
        off = (ks % R) * 2048
        for k, b in ((0, vTA), (1, vTB)):
            A(f'ds_read_b64_tr_b16 {vr(d + 4 * k, 2)}, v{b} offset:{off}', tag=('f', ks))
            A(f'ds_read_b64_tr_b16 {vr(d + 4 * k + 2, 2)}, v{b} offset:{off + 1024}', tag=('f', ks))

    for ks in range(max(R, Dp)):
        if ks < R - 2:
            if len(A.vm) > 56:
                A.wait_vm(('w', 0))
            dma(ks)
        if ks < Dp:
            act(ks)
    A.wait_vm(('w', 0))
    wread(0)
    for ks in range(nks):
        if ks + 1 < nks:
            A.wait_vm(('w', (ks + 1) & ~1))
            wread(ks + 1)
        A.wait_vm(('a', ks))
        A.wait_lg(('f', ks))
        wf = WF + 8 * (ks & 1)
        ar = ring_regs + 8 * (ks % Dp)
        for an in range(2):
            for am in range(2):
                a = ACC + 16 * (am + 2 * an)
                if w_is_A:
                    ops = f'{vr(wf + 4 * am, 4)}, {vr(ar + 4 * an, 4)}'
                else:
                    ops = f'{vr(ar + 4 * am, 4)}, {vr(wf + 4 * an, 4)}'
                A(f'v_mfma_f32_32x32x16_bf16 {vr(a, 16)}, {ops}, {"0" if ks == 0 else vr(a, 16)}')
        if ks % 2 == 1:
            dma(ks - 1 + R) if ks - 1 + R >= R else None
        if ks == 0:
            dma(R - 2)
        act(ks + Dp)


def phase3(A, layer, name):
    ACC, RING, WF = 16, 80, 176
    Dp, R, REG = 12, 20, 40960
    vD, vTA, vTB, vOwn, vRd, BI = 8, 12, 13, 14, 248, 240
    A(f's_cmp_ge_u32 s{sJ}, 28')
    A(f's_cbranch_scc1 L_end_{name}')
    dma64_voffs(A, F * 2, vD)
    A(f's_mul_i32 s{sK2}, s{sW}, {REG}')
    A(f's_mul_i32 s{sK3}, s{sW}, {512 * F * 2}')
    A(f's_lshl_b32 s{sT0}, s{sC}, 7')
    A(f's_add_u32 s{sK3}, s{sK3}, s{sT0}')
    for an in range(2):
        A(f's_xor_b32 s{sT0}, s{sW1}, {an}')
        A(f's_lshl_b32 s{sT1}, s{sI}, 1')
        A(f's_add_u32 s{sT0}, s{sT0}, s{sT1}')
        A(f's_lshl_b32 s{sT0}, s{sT0}, 17')
        A(f's_lshl_b32 s{sT1}, s{sW}, 15')
        A(f's_add_u32 s{sT0}, s{sT0}, s{sT1}')
        A(f's_add_u32 s{sK0 + an}, s{sT0}, {WS_HF[layer]}')
    A(f's_lshl_b32 s{sT0}, s{sW0}, 9')
    A(f's_add_u32 s{sT0}, s{sT0}, s{sK2}')
    A(f'v_add_u32 v{vTA}, s{sT0}, v{vTR}')
    A(f's_xor_b32 s{sT0}, s{sT0}, 512')
    A(f'v_add_u32 v{vTB}, s{sT0}, v{vTR}')
    reduce_addrs(A, REG, vOwn, vRd)
    A(f'v_lshlrev_b32 v5, 3, v{vH}')
    A(f's_lshl_b32 s{sT0}, s{sC}, 7')
    A(f's_lshl_b32 s{sT1}, s{sW0}, 6')
    A(f's_add_u32 s{sT0}, s{sT0}, s{sT1}')
    for g in range(4):
        A(f'buffer_load_dwordx2 {vr(BI + 2 * g, 2)}, v5, {srd("B1")}, s{sT0} offen offset:{16 * g}', tag='bias')
    ksplit_gemm(A, 32, 'W1', F * 2, sK3, sK0, True, ACC, RING, Dp, R, REG, vD, vTA, vTB, WF)
    O, TMP = 80, 96
    reduce4(A, ACC, O, TMP, vOwn, vRd)
    for i in range(8):
        A(f'v_lshlrev_b32 v{TMP + 2 * i}, 16, v{BI + i}')
        A(f'v_and_b32 v{TMP + 2 * i + 1}, 0xffff0000, v{BI + i}')
    c = 0.7978845608028654
    k1 = -2.0 * c * LOG2E
    k2 = k1 * 0.044715
    A(f's_mov_b32 s{sT0}, {f32(k2)}')
    A(f'v_mov_b32 v5, {f32(k1)}')
    for i in range(16):
        A(f'v_add_f32 v{O + i}, v{O + i}, v{TMP + i}')
    for i in range(16):
        A(f'v_mul_f32 v{TMP + i}, v{O + i}, v{O + i}')
    for i in range(16):
        A(f'v_fma_f32 v{TMP + i}, v{TMP + i}, s{sT0}, v5')
    for i in range(16):
        A(f'v_mul_f32 v{TMP + i}, v{TMP + i}, v{O + i}')
    for i in range(16):
        A(f'v_exp_f32 v{TMP + i}, v{TMP + i}')
    for i in range(16):
        A(f'v_add_f32 v{TMP + i}, 1.0, v{TMP + i}')
    for i in range(16):
        A(f'v_rcp_f32 v{TMP + i}, v{TMP + i}')
    for i in range(16):
        A(f'v_mul_f32 v{O + i}, v{O + i}, v{TMP + i}')
    for i in range(8):
        A(f'v_cvt_pk_bf16_f32 v{TMP + i}, v{O + 2 * i}, v{O + 2 * i + 1}')
    A(f's_lshl_b32 s{sT0}, s{sI}, 1')
    A(f's_add_u32 s{sT0}, s{sT0}, s{sW1}')
    A(f's_mul_i32 s{sT0}, s{sT0}, 112')
    A(f's_lshl_b32 s{sT1}, s{sC}, 2')
    A(f's_add_u32 s{sT0}, s{sT0}, s{sT1}')
    A(f's_lshl_b32 s{sT1}, s{sW0}, 1')
    A(f's_add_u32 s{sT0}, s{sT0}, s{sT1}')
    A(f's_lshl_b32 s{sT0}, s{sT0}, 10')
    A(f's_add_u32 s{sT0}, s{sT0}, {WS_UF[layer]}')
    A(f'buffer_store_dwordx4 {vr(TMP, 4)}, v{vL16}, {srd("WS")}, s{sT0} offen sc0 sc1')
    A(f'buffer_store_dwordx4 {vr(TMP + 4, 4)}, v{vL16}, {srd("WS")}, s{sT0} offen offset:1024 sc0 sc1')
    A.wait_vm_all()


def phase4(A, layer):
    ACC, RING, WF = 16, 80, 176
    Dp, R, REG = 12, 20, 40960
    vD, vTA, vTB, vOwn, vRd, RES, BI = 8, 12, 13, 14, 248, 240, 15
    dma64_voffs(A, S * 2, vD)
    A(f's_mul_i32 s{sK2}, s{sW}, {REG}')
    A(f's_mul_i32 s{sK3}, s{sW}, {448 * S * 2}')
    A(f's_lshl_b32 s{sT0}, s{sT}, 7')
    A(f's_add_u32 s{sK3}, s{sK3}, s{sT0}')
    for am in range(2):
        A(f's_xor_b32 s{sT0}, s{sW0}, {am}')
        A(f's_lshl_b32 s{sT1}, s{sI}, 1')
        A(f's_add_u32 s{sT0}, s{sT0}, s{sT1}')
        A(f's_mul_i32 s{sT0}, s{sT0}, {112 * 1024}')
        A(f's_mul_i32 s{sT1}, s{sW}, {28 * 1024}')
        A(f's_add_u32 s{sT0}, s{sT0}, s{sT1}')
        A(f's_add_u32 s{sK0 + am}, s{sT0}, {WS_UF[layer]}')
    A(f's_lshl_b32 s{sT0}, s{sW1}, 9')
    A(f's_add_u32 s{sT0}, s{sT0}, s{sK2}')
    A(f'v_add_u32 v{vTA}, s{sT0}, v{vTR}')
    A(f's_xor_b32 s{sT0}, s{sT0}, 512')
    A(f'v_add_u32 v{vTB}, s{sT0}, v{vTR}')
    reduce_addrs(A, REG, vOwn, vRd)
    xf_addr(A, WS_X1[layer], sT0)
    A(f'buffer_load_dwordx4 {vr(RES, 4)}, v{vL16}, {srd("WS")}, s{sT0} offen sc1', tag='res')
    A(f'buffer_load_dwordx4 {vr(RES + 4, 4)}, v{vL16}, {srd("WS")}, s{sT0} offen offset:1024 sc1', tag='res')
    A(f'v_and_b32 v7, 31, v{vL}')
    A('v_lshlrev_b32 v5, 1, v7')
    A(f's_lshl_b32 s{sT0}, s{sT}, 7')
    A(f's_lshl_b32 s{sT1}, s{sW1}, 6')
    A(f's_add_u32 s{sT0}, s{sT0}, s{sT1}')
    A(f'buffer_load_ushort v{BI}, v5, {srd("B2")}, s{sT0} offen', tag='res')
    ksplit_gemm(A, 28, 'W2', S * 2, sK3, sK0, False, ACC, RING, Dp, R, REG, vD, vTA, vTB, WF)
    O, TMP = 80, 96
    reduce4(A, ACC, O, TMP, vOwn, vRd)
    A(f'v_lshlrev_b32 v{BI}, 16, v{BI}')
    for i in range(8):
        A(f'v_lshlrev_b32 v{TMP + 2 * i}, 16, v{RES + i}')
        A(f'v_and_b32 v{TMP + 2 * i + 1}, 0xffff0000, v{RES + i}')
    for i in range(16):
        A(f'v_add_f32 v{O + i}, v{O + i}, v{BI}')
    for i in range(16):
        A(f'v_add_f32 v{O + i}, v{O + i}, v{TMP + i}')
    for i in range(8):
        A(f'v_cvt_pk_bf16_f32 v{RES + i}, v{O + 2 * i}, v{O + 2 * i + 1}')
    if layer == 0:
        xf_addr(A, 1, sT0)
        A(f'buffer_store_dwordx4 {vr(RES, 4)}, v{vL16}, {srd("WS")}, s{sT0} offen sc0 sc1')
        A(f'buffer_store_dwordx4 {vr(RES + 4, 4)}, v{vL16}, {srd("WS")}, s{sT0} offen offset:1024 sc0 sc1')
    else:
        std_to_pi(A, RES)
        std_to_pi(A, RES + 4)
        A('v_lshlrev_b32 v5, 10, v7')
        A(f'v_lshl_add_u32 v5, v{vH}, 4, v5')
        A(f's_lshl_b32 s{sT0}, s{sT}, 1')
        A(f's_add_u32 s{sT0}, s{sT0}, s{sW1}')
        A(f's_lshl_b32 s{sT0}, s{sT0}, 15')
        A(f's_lshl_b32 s{sT1}, s{sI}, 1')
        A(f's_add_u32 s{sT1}, s{sT1}, s{sW0}')
        A(f's_lshl_b32 s{sT1}, s{sT1}, 6')
        A(f's_add_u32 s{sT0}, s{sT0}, s{sT1}')
        A(f'buffer_store_dwordx4 {vr(RES, 4)}, v5, {srd("OUT")}, s{sT0} offen')
        A(f'buffer_store_dwordx4 {vr(RES + 4, 4)}, v5, {srd("OUT")}, s{sT0} offen offset:32')
    A.wait_vm_all()


def build(extra_empty=0):
    A = Asm()
    names = []
    hdr = []

    def K(name, lds, srds, body):
        names.append(name)
        hdr.append(f'; @launch kernel={name} grid=(256,1,1) block=(256,1,1) lds={lds}')
        if body is k_init:
            k_init(A, name)
        else:
            prologue(A, name, srds)
            body()
            epilogue(A, name)

    K('init_kernel', 0, None, k_init)
    for l in range(2):
        K(f'p1l{l}_kernel', 163840, ['X', 'WQKV', 'WS'], lambda: phase1(A, l))
        K(f'p2l{l}_kernel', 98304, ['X', 'WO', 'WS'], lambda: phase2(A, l))
        K(f'p3l{l}_kernel', 163840, ['W1', 'B1', 'WS'], lambda: phase3(A, l, f'p3l{l}_kernel'))
        K(f'p4l{l}_kernel', 163840, ['W2', 'B2', 'OUT', 'WS'], lambda: phase4(A, l))
    for e in range(extra_empty):
        hdr.append('; @launch kernel=empty_kernel grid=(256,1,1) block=(256,1,1) lds=0')
    if extra_empty:
        names.append('empty_kernel')
        A.raw('.text\n.globl empty_kernel\n.p2align 8\n.type empty_kernel,@function\nempty_kernel:\n    s_endpgm')
    out = '\n'.join(hdr) + '\n.amdgcn_target "amdgcn-amd-amdhsa--gfx950"\n' + A.text()
    for n in names:
        out += descriptor(n)
    return out


if __name__ == '__main__':
    dst = sys.argv[1] if len(sys.argv) > 1 else 'interleave_layers__linear_attn_block__mixer_token_mlp__prompt.s'
    ee = int(sys.argv[2]) if len(sys.argv) > 2 else 0
    open(dst, 'w').write(build(ee))
    print('wrote', dst)
```
